```python
import torch

def _softmax(x, axis=-1):
    return torch.softmax(x, dim=axis)
def _gelu(x):
    return torch.nn.functional.gelu(x, approximate="tanh")
def _silu(x):
    return torch.nn.functional.silu(x)
def _sigmoid(x):
    return torch.sigmoid(x)
def _layernorm(x, axis=-1, eps=1e-5):
    m = x.mean(dim=axis, keepdim=True)
    v = x.var(dim=axis, keepdim=True, unbiased=False)
    return (x - m) / torch.sqrt(v + eps)
def _scatter_add(tgt, idx, src, axis=0):
    return tgt.clone().index_add_(axis, idx, src)
def _segment_sum(src, seg, n):
    out = torch.zeros((n,) + src.shape[1:], dtype=src.dtype)
    return out.index_add_(0, seg, src)
def _pad(x, pw):
    flat = tuple(v for pair in reversed(pw) for v in pair)
    return torch.nn.functional.pad(x, flat)

kernel_name = 'standalone__paged_block_table_kv_pagedattention__sampling'

def setup_inputs():

    _w = (lambda a: (lambda t: t.to(torch.bfloat16) if t.is_floating_point() else t)(torch.as_tensor(a)))
    B, Hq, Hkv, Sq, Skv, D = 32, 32, 16, 16, 2048, 128
    bs = 16
    nbps = max(1, Skv // bs)
    num_phys = B * nbps + 4
    bt = torch.randperm(num_phys)[: B * nbps].reshape(B, nbps).to(torch.int64)
    cl = (nbps * bs - (torch.arange(1, B + 1, dtype=torch.int64) * 2654435761) % max(1, nbps * bs // 2)).to(torch.int64)
    return {
        "q": _w((lambda *s: torch.randn(*s, dtype=torch.bfloat16) * 0.8)(B, Hq, Sq, D)),
        "k_cache": _w((lambda *s: torch.randn(*s, dtype=torch.bfloat16) * 0.8)(num_phys, bs, Hkv, D)),
        "v_cache": _w((lambda *s: torch.randn(*s, dtype=torch.bfloat16) * 0.05)(num_phys, bs, Hkv, D)),
        "block_table": _w(bt),
        "context_lens": _w(cl),
    }

def reference(q, k_cache, v_cache, block_table, context_lens):
    B, Hq, Sq, D = q.shape
    bs = k_cache.shape[1]
    Hkv = k_cache.shape[2]
    nbps = block_table.shape[1]
    Skv = nbps * bs
    bt = block_table.reshape(-1)
    k = (lambda x, *d: x.permute(*d))(k_cache[bt].reshape(B, Skv, Hkv, D), 0, 2, 1, 3)
    v = (lambda x, *d: x.permute(*d))(v_cache[bt].reshape(B, Skv, Hkv, D), 0, 2, 1, 3)
    g = Hq // Hkv
    qg = q.reshape(B, Hkv, g, Sq, D)
    scores = torch.einsum("bhgqd,bhkd->bhgqk", qg, k) * (D ** -0.5)
    pos = torch.arange(Skv)
    msk = pos[None, :] < context_lens[:, None]
    scores = torch.where(msk[:, None, None, None, :], scores, -1e9)
    p = _softmax(scores, axis=-1)
    out = torch.einsum("bhgqk,bhkd->bhgqd", p, v)
    return out.reshape(B, Hq, Sq, D)
```

```python
import sys, math, struct

NAME = "standalone__paged_block_table_kv_pagedattention__sampling_kernel"
HEADER = """; Kernarg layout for this problem (64 bytes, ptrs only, base s[0:1]):
"""

def f2u(x):
    return struct.unpack("<I", struct.pack("<f", x))[0]

def gen(W=None, stamps=False, pol="nt", stpol="", name=NAME, hB_xor=0):
    if W is None: W = [6]*16
    if isinstance(W, int): W = [W]*16
    assert all(1 <= w <= 8 for w in W)
    L = []
    A = L.append
    RING = 0
    CB = 65536
    QB = 131072
    ML = 147456
    LDS = 148480
    KVBYTES = 4100*65536
    CL = [2048-((i*2654435761) % 1024) for i in range(1, 33)]
    order = sorted(range(32), key=lambda i: CL[i])
    pairs = [(order[31-p], order[p]) for p in range(16)]
    sW = 3
    sQ, sK, sV, sBT, sCLp, sOUT = 4, 6, 8, 10, 12, 14
    rK, rV, rQ, rBT, rO = 16, 20, 24, 28, 32
    sTab = 36
    sOff = 36
    sBA, sBB, sH, sHB = 44, 45, 46, 47
    sClA, sClB = 48, 49
    sLam, sRem, sLeft, sRemB0, sItem = 50, 51, 52, 53, 54
    sLamN, sRemN = 55, 56
    sKb, sVb = 57, 58
    sC, sNC = 59, 60
    sT0, sT1, sT2, sT3 = 61, 62, 63, 64
    sOutOff = 65
    sNB = 66
    sZA, sZB = 67, 68
    sQd = 69
    sWS = 70
    sTS = 72
    rWS = 80
    vL = 1
    vF = 2
    vC = 6
    vT = 14
    vKA = 22
    vVA = 30
    vRow = 38
    vHf = 39
    vM, vLs, vAl, vAl2, vNm, vt0, vt1, vt2, vOOB, vNinf = 40, 41, 42, 43, 44, 45, 46, 47, 48, 49
    vWA = 50
    vRA = 51
    vMA = 53
    vMR = 54
    vSO = 55
    vS = 56
    vP = 72
    vQ = 80
    vK = 112
    vV = 144
    vO = 176
    NV = 240

    A(HEADER.rstrip())
    A(f"; @launch grid=(256,1,1) block=(256,1,1) lds={LDS}")
    A('.amdgcn_target "amdgcn-amd-amdhsa--gfx950"')
    A(".text")
    A(f".globl {name}")
    A(".p2align 8")
    A(f".type {name},@function")
    A(f"{name}:")
    if stamps: A(f"s_memrealtime s[{sTS}:{sTS+1}]")
    A("s_cmp_ge_u32 s2, 256")
    A("s_cbranch_scc1 L_done")
    A(f"s_load_dwordx8 s[4:11], s[0:1], 0")
    A(f"s_load_dwordx4 s[12:15], s[0:1], 32")
    if stamps: A(f"s_load_dwordx2 s[{sWS}:{sWS+1}], s[0:1], 56")
    A(f"v_lshrrev_b32 v{vt0}, 6, v0")
    A(f"v_and_b32 v{vL}, 63, v0")
    for i in range(8):
        e0 = pairs[2*i][0] | (pairs[2*i][1] << 8)
        e1 = pairs[2*i+1][0] | (pairs[2*i+1][1] << 8)
        A(f"s_mov_b32 s{sTab+i}, {hex(e0 | (e1 << 16))}")
    A(f"v_readfirstlane_b32 s{sW}, v{vt0}")
    A(f"s_lshr_b32 s{sT0}, s2, 5")
    A(f"s_mov_b32 m0, s{sT0}")
    A(f"s_and_b32 s{sH}, s2, 15")
    A(f"s_movrels_b32 s{sT1}, s{sTab}")
    A(f"s_and_b32 s{sT0}, s2, 16")
    A(f"s_lshr_b32 s{sT1}, s{sT1}, s{sT0}")
    A(f"s_and_b32 s{sBA}, s{sT1}, 31")
    A(f"s_bfe_u32 s{sBB}, s{sT1}, 0x50008")
    A(f"s_xor_b32 s{sHB}, s{sH}, {hB_xor}")
    A(f"v_mov_b32 v{vt0}, s{sBA}")
    A(f"v_mov_b32 v{vt1}, s{sBB}")
    A(f"v_and_b32 v{vt2}, 16, v{vL}")
    A(f"v_cmp_eq_u32 vcc, 0, v{vt2}")
    A(f"v_and_b32 v{vt2}, 15, v{vL}")
    A(f"v_lshlrev_b32 v{vt2}, 5, v{vt2}")
    A(f"v_cndmask_b32 v{vt0}, v{vt1}, v{vt0}, vcc")
    A(f"v_lshl_add_u32 v{vt0}, v{vt0}, 9, v{vt2}")
    A(f"s_mov_b32 s{rBT+2}, 16384")
    A(f"s_mov_b32 s{rBT+3}, 0x20000")
    A(f"s_lshl_b32 s{sT2}, s{sBA}, 2")
    A(f"s_lshl_b32 s{sT3}, s{sBB}, 2")
    A("s_waitcnt lgkmcnt(0)")
    A(f"s_mov_b32 s{rBT}, s{sBT}")
    A(f"s_mov_b32 s{rBT+1}, s{sBT+1}")
    A(f"buffer_load_dwordx4 v[{vT}:{vT+3}], v{vt0}, s[{rBT}:{rBT+3}], 0 offen")
    A(f"buffer_load_dwordx4 v[{vT+4}:{vT+7}], v{vt0}, s[{rBT}:{rBT+3}], 0 offen offset:16")
    A(f"s_load_dword s{sClA}, s[{sCLp}:{sCLp+1}], s{sT2}")
    A(f"s_load_dword s{sClB}, s[{sCLp}:{sCLp+1}], s{sT3}")
    A(f"v_lshrrev_b32 v{vRow}, 4, v{vL}")
    A(f"v_and_b32 v{vt1}, 15, v{vL}")
    A(f"v_lshlrev_b32 v{vt2}, 2, v{vRow}")
    A(f"v_xor_b32 v{vt1}, v{vt1}, v{vt2}")
    A(f"v_lshlrev_b32 v{vt1}, 4, v{vt1}")
    A(f"s_mov_b32 s{rQ}, s{sQ}")
    A(f"s_mov_b32 s{rQ+1}, s{sQ+1}")
    A(f"s_mov_b32 s{rQ+2}, {32*131072}")
    A(f"s_mov_b32 s{rQ+3}, 0x20000")
    A(f"v_lshl_add_u32 v{vt2}, v{vRow}, 8, v{vt1}")
    A(f"s_lshl_b32 s{sT0}, s{sW}, 5")
    A(f"s_and_b32 s{sT0}, s{sT0}, 32")
    A(f"v_xor_b32 v{vt2}, s{sT0}, v{vt2}")
    A(f"v_xor_b32 v{vNm}, 16, v{vt2}")
    A(f"s_lshl_b32 s{sT0}, s{sW}, 11")
    A(f"s_lshl_b32 s{sT1}, s{sBA}, 17")
    A(f"s_lshl_b32 s{sT2}, s{sH}, 13")
    A(f"s_add_u32 s{sOutOff}, s{sT1}, s{sT2}")
    A(f"s_add_u32 s{sT1}, s{sOutOff}, s{sT0}")
    A(f"s_add_u32 m0, s{sT0}, {QB}")
    A(f"s_lshl_b32 s{sT2}, s{sBB}, 17")
    A(f"buffer_load_dwordx4 v{vt2}, s[{rQ}:{rQ+3}], s{sT1} offen lds")
    A(f"buffer_load_dwordx4 v{vNm}, s[{rQ}:{rQ+3}], s{sT1} offen offset:1024 lds")
    A(f"s_lshl_b32 s{sT3}, s{sHB}, 13")
    A(f"s_add_u32 s{sT2}, s{sT2}, s{sT3}")
    A(f"s_add_u32 s{sT1}, s{sT2}, s{sT0}")
    A(f"s_add_u32 m0, s{sT0}, {QB+8192}")
    A(f"v_lshl_add_u32 v{vF}, v{vRow}, 12, v{vt1}")
    A(f"buffer_load_dwordx4 v{vt2}, s[{rQ}:{rQ+3}], s{sT1} offen lds")
    A(f"buffer_load_dwordx4 v{vNm}, s[{rQ}:{rQ+3}], s{sT1} offen offset:1024 lds")
    for k in range(1, 4):
        A(f"v_xor_b32 v{vF+k}, {k*16}, v{vF}")
    for r, s in ((rK, sK), (rV, sV)):
        A(f"s_mov_b32 s{r}, s{s}")
        A(f"s_mov_b32 s{r+1}, s{s+1}")
        A(f"s_mov_b32 s{r+2}, {KVBYTES}")
        A(f"s_mov_b32 s{r+3}, 0x20000")
    A(f"s_lshl_b32 s{sKb}, s{sW}, 14")
    A(f"s_add_u32 s{sVb}, s{sKb}, 8192")
    A(f"v_mov_b32 v{vOOB}, 0x80000000")
    A(f"s_lshl_b32 s{sT0}, s{sH}, 8")
    A(f"s_lshl_b32 s{sT1}, s{sHB}, 8")
    A(f"s_add_u32 s{sT0}, s{sT0}, s{sKb}")
    A(f"s_add_u32 s{sT1}, s{sT1}, s{sKb}")
    A(f"v_mov_b32 v{vt0}, s{sT0}")
    A(f"v_mov_b32 v{vt1}, s{sT1}")
    A(f"v_cndmask_b32 v{vt0}, v{vt1}, v{vt0}, vcc")
    A("s_waitcnt lgkmcnt(0)")
    for cl, z in ((sClA, sZA), (sClB, sZB)):
        A(f"s_cmp_lt_i32 s{cl}, 1")
        A(f"s_cselect_b32 s{z}, 1, 0")
        A(f"s_cselect_b32 s{cl}, 2048, s{cl}")
        A(f"s_min_i32 s{cl}, s{cl}, 2048")
    A(f"s_lshl_b32 s{sT0}, s{sW}, 2")
    A(f"s_sub_i32 s{sRem}, s{sClA}, s{sT0}")
    A(f"s_sub_i32 s{sRemB0}, s{sClB}, s{sT0}")
    A(f"s_sub_u32 s{sLeft}, s{sClA}, 1")
    A(f"s_lshr_b32 s{sLeft}, s{sLeft}, 7")
    A(f"s_sub_u32 s{sNB}, s{sClB}, 1")
    A(f"s_lshr_b32 s{sNB}, s{sNB}, 7")
    A(f"s_mov_b32 s{sLam}, 0")
    A(f"s_mov_b32 s{sItem}, 0")

    def maskblock(srem):
        for j in range(8):
            A(f"s_sub_i32 s{sT0}, s{srem}, {16*j}")
            A(f"v_cmp_gt_i32 vcc, s{sT0}, v{vRow}")
            A("s_nop 1")
            A(f"v_cndmask_b32 v{vC+j}, v{vOOB}, v{vF+(j&3)}, vcc")
    maskblock(sRem)
    A("s_waitcnt vmcnt(4)")
    for j in range(8):
        A(f"v_lshl_add_u32 v{vT+j}, v{vT+j}, 16, v{vt0}")
    A(f"s_mov_b32 m0, s{sKb}")
    for j in range(8):
        A(f"v_readlane_b32 s{sOff+j}, v{vT+j}, 0")
    if stamps: A(f"s_memrealtime s[{sTS+2}:{sTS+3}]")
    for r in (rK, rV):
        for j in range(8):
            A(f"buffer_load_dwordx4 v{vC+j}, s[{r}:{r+3}], s{sOff+j} offen {pol} lds")
            A(f"s_add_u32 m0, m0, 1024")
            A("s_nop 0")
    A(f"v_and_b32 v{vt0}, 3, v{vL}")
    A(f"v_lshlrev_b32 v{vt0}, 2, v{vt0}")
    A(f"v_bfe_u32 v{vt1}, v{vL}, 2, 2")
    A(f"v_or_b32 v{vt0}, v{vt0}, v{vt1}")
    A(f"v_lshrrev_b32 v{vt1}, 5, v{vL}")
    A(f"v_lshlrev_b32 v{vHf}, 4, v{vt1}")
    A(f"v_xor_b32 v{vt0}, v{vt0}, v{vt1}")
    A(f"v_lshlrev_b32 v{vt0}, 4, v{vt0}")
    A(f"v_and_b32 v{vt2}, 31, v{vL}")
    A(f"v_lshl_add_u32 v{vt0}, v{vt2}, 8, v{vt0}")
    A(f"v_add_u32 v{vKA}, s{sKb}, v{vt0}")
    for kk in range(1, 8):
        A(f"v_xor_b32 v{vKA+kk}, {kk*32}, v{vKA}")
    A(f"v_bfe_u32 v{vt0}, v{vL}, 2, 2")
    A(f"v_lshl_add_u32 v{vt2}, v{vt1}, 2, v{vt0}")
    A(f"v_lshlrev_b32 v{vt2}, 8, v{vt2}")
    A(f"v_lshl_add_u32 v{vt2}, v{vt0}, 6, v{vt2}")
    A(f"v_bfe_u32 v{vt0}, v{vL}, 4, 1")
    A(f"v_lshlrev_b32 v{vt0}, 1, v{vt0}")
    A(f"v_bfe_u32 v{vNm}, v{vL}, 1, 1")
    A(f"v_or_b32 v{vt0}, v{vt0}, v{vNm}")
    A(f"v_xor_b32 v{vt0}, v{vt0}, v{vt1}")
    A(f"v_lshl_add_u32 v{vt2}, v{vt0}, 4, v{vt2}")
    A(f"v_and_b32 v{vt0}, 1, v{vL}")
    A(f"v_lshl_add_u32 v{vt2}, v{vt0}, 3, v{vt2}")
    A(f"v_add_u32 v{vVA}, s{sVb}, v{vt2}")
    for i in range(1, 8):
        A(f"v_xor_b32 v{vVA+i}, {((i>>1)<<6)|((i&1)<<5)}, v{vVA}")
    A(f"v_and_b32 v{vt0}, 31, v{vL}")
    A(f"v_lshlrev_b32 v{vt2}, 9, v{vt0}")
    A(f"v_lshl_add_u32 v{vt2}, v{vt1}, 8, v{vt2}")
    A(f"v_and_b32 v{vNm}, 7, v{vL}")
    A(f"v_lshl_add_u32 v{vt2}, v{vNm}, 4, v{vt2}")
    A(f"s_add_u32 s{sT0}, s{sKb}, {CB}")
    A(f"v_add_u32 v{vWA}, s{sT0}, v{vt2}")
    A(f"s_lshl_b32 s{sT0}, s{sW}, 3")
    A(f"s_add_u32 s{sT1}, s{sT0}, {ML}")
    A(f"v_lshl_add_u32 v{vMA}, v{vt0}, 5, s{sT1}")
    A(f"v_add_u32 v{vt0}, s{sT0}, v{vRow}")
    A(f"s_mov_b32 s{sT1}, {ML}")
    A(f"v_lshl_add_u32 v{vMR}, v{vt0}, 5, s{sT1}")
    A(f"v_and_b32 v{vt1}, 15, v{vL}")
    A(f"v_lshlrev_b32 v{vt2}, 4, v{vt1}")
    A(f"v_lshl_add_u32 v{vSO}, v{vt0}, 8, v{vt2}")
    A(f"v_xor_b32 v{vt1}, v{vt1}, v{vRow}")
    A(f"v_lshlrev_b32 v{vt1}, 4, v{vt1}")
    A(f"v_lshl_add_u32 v{vt1}, v{vt0}, 9, v{vt1}")
    A(f"v_add_u32 v{vRA}, {CB}, v{vt1}")
    A(f"v_xor_b32 v{vt1}, 64, v{vRA}")
    A(f"v_add_u32 v{vRA+1}, 2048, v{vt1}")
    A(f"s_mov_b32 s{rO}, s{sOUT}")
    A(f"s_mov_b32 s{rO+1}, s{sOUT+1}")
    A(f"s_mov_b32 s{rO+2}, {32*131072}")
    A(f"s_mov_b32 s{rO+3}, 0x20000")
    c = (128 ** -0.5) * math.log2(math.e)
    A(f"s_mov_b32 s{sC}, {hex(f2u(c))}")
    A(f"s_mov_b32 s{sNC}, {hex(f2u(-c))}")
    A(f"v_mov_b32 v{vNinf}, 0xff800000")
    A(f"s_sub_u32 s{sQd}, {QB}, s{sKb}")
    A("s_waitcnt vmcnt(16)")
    A("s_barrier")
    A("s_waitcnt vmcnt(8)")
    for kk in range(8):
        A(f"ds_read_b128 v[{vK+4*kk}:{vK+4*kk+3}], v{vKA+kk}")
    A("L_item:")
    for kk in range(8):
        A(f"v_add_u32 v{vS+kk}, s{sQd}, v{vKA+kk}")
    for kk in range(8):
        A(f"ds_read_b128 v[{vQ+4*kk}:{vQ+4*kk+3}], v{vS+kk}")
    for i in range(64):
        A(f"v_mov_b32 v{vO+i}, 0")
    A(f"v_mov_b32 v{vM}, {hex(f2u(-1e30))}")
    A(f"v_mov_b32 v{vLs}, 0")
    A(f"s_cmp_eq_u32 s{sZA}, 0")
    A("s_cbranch_scc1 L_loop")
    A("s_waitcnt lgkmcnt(0)")
    for i in range(32):
        A(f"v_mov_b32 v{vQ+i}, 0")
    A(".p2align 3")
    A("L_loop:")
    A(f"s_add_u32 s{sLamN}, s{sLam}, 1")
    A(f"s_sub_i32 s{sRemN}, s{sRem}, 128")
    A(f"s_cmp_gt_u32 s{sLeft}, 0")
    A(f"s_cselect_b32 s{sLamN}, s{sLamN}, 16")
    A(f"s_cselect_b32 s{sRemN}, s{sRemN}, s{sRemB0}")
    for j in range(8):
        A(f"v_readlane_b32 s{sOff+j}, v{vT+j}, s{sLamN}")
    maskblock(sRemN)
    A(f"s_mov_b32 m0, s{sKb}")
    slot = [0]
    def S(extra_wait=""):
        s = slot[0]; slot[0] += 1
        r = rK if s < 8 else rV
        j = s & 7
        A(f"s_waitcnt vmcnt({W[s]-1}){extra_wait}")
        A(f"buffer_load_dwordx4 v{vC+j}, s[{r}:{r+3}], s{sOff+j} offen {pol} lds")
        if s != 15: A(f"s_add_u32 m0, m0, 1024")
    S(" lgkmcnt(0)")
    for kk in range(8):
        c_ = "0" if kk == 0 else f"v[{vS}:{vS+15}]"
        A(f"v_mfma_f32_32x32x16_bf16 v[{vS}:{vS+15}], v[{vK+4*kk}:{vK+4*kk+3}], v[{vQ+4*kk}:{vQ+4*kk+3}], {c_}")
    S()
    A("s_nop 7")
    A(f"s_cmp_ge_i32 s{sRem}, 128")
    A("s_cbranch_scc1 L_nomask")
    A(f"v_sub_u32 v{vt0}, s{sRem}, v{vHf}")
    for i in range(16):
        A(f"v_cmp_lt_i32 vcc, {32*(i>>2)+(i&3)}, v{vt0}")
        A("s_nop 1")
        A(f"v_cndmask_b32 v{vS+i}, v{vNinf}, v{vS+i}, vcc")
    A("L_nomask:")
    A(f"v_max3_f32 v{vt0}, v{vS}, v{vS+1}, v{vS+2}")
    A(f"v_max3_f32 v{vt1}, v{vS+3}, v{vS+4}, v{vS+5}")
    A(f"v_max3_f32 v{vt0}, v{vt0}, v{vS+6}, v{vS+7}")
    A(f"v_max3_f32 v{vt1}, v{vt1}, v{vS+8}, v{vS+9}")
    A(f"v_max3_f32 v{vt0}, v{vt0}, v{vS+10}, v{vS+11}")
    A(f"v_max3_f32 v{vt1}, v{vt1}, v{vS+12}, v{vS+13}")
    A(f"v_max3_f32 v{vt0}, v{vt0}, v{vS+14}, v{vS+15}")
    A(f"v_max_f32 v{vt0}, v{vt0}, v{vt1}")
    A(f"v_mov_b32 v{vt1}, v{vt0}")
    A("s_nop 1")
    A(f"v_permlane32_swap_b32 v{vt0}, v{vt1}")
    A("s_nop 1")
    A(f"v_max3_f32 v{vt2}, v{vt0}, v{vt1}, v{vM}")
    A(f"v_mul_f32 v{vNm}, s{sNC}, v{vt2}")
    A(f"v_fma_f32 v{vAl}, v{vM}, s{sC}, v{vNm}")
    A(f"v_mov_b32 v{vM}, v{vt2}")
    A(f"v_exp_f32 v{vAl}, v{vAl}")
    for i in range(16):
        A(f"v_fma_f32 v{vS+i}, v{vS+i}, s{sC}, v{vNm}")
    S()
    for i in range(16):
        A(f"v_exp_f32 v{vS+i}, v{vS+i}")
    A(f"v_mul_f32 v{vLs}, v{vLs}, v{vAl}")
    A(f"v_add_f32 v{vt0}, v{vS}, v{vS+1}")
    A(f"v_add_f32 v{vt1}, v{vS+2}, v{vS+3}")
    for i in range(4, 16, 2):
        A(f"v_add_f32 v{vt0}, v{vt0}, v{vS+i}")
        A(f"v_add_f32 v{vt1}, v{vt1}, v{vS+i+1}")
    A(f"v_add_f32 v{vLs}, v{vLs}, v{vt0}")
    A(f"v_add_f32 v{vLs}, v{vLs}, v{vt1}")
    for i in range(8):
        A(f"v_cvt_pk_bf16_f32 v{vP+i}, v{vS+2*i}, v{vS+2*i+1}")
    S()
    for i in range(0, 64, 2):
        A(f"v_pk_mul_f32 v[{vO+i}:{vO+i+1}], v[{vO+i}:{vO+i+1}], v[{vAl}:{vAl+1}] op_sel_hi:[1,0]")
    for _ in range(4):
        S()
        if slot[0] < 8: A("s_nop 0")
    A("s_waitcnt vmcnt(8)")
    for d in range(4):
        for m in range(2):
            for e in range(2):
                r = vV + (d*2+m)*4 + e*2
                A(f"ds_read_b64_tr_b16 v[{r}:{r+1}], v{vVA+d*2+e} offset:{e*2048+m*4096}")
    S(" lgkmcnt(0)")
    for m in range(2):
        for d in range(4):
            r = vV + (d*2+m)*4
            A(f"v_mfma_f32_32x32x16_bf16 v[{vO+16*d}:{vO+16*d+15}], v[{r}:{r+3}], v[{vP+4*m}:{vP+4*m+3}], v[{vO+16*d}:{vO+16*d+15}]")
    A(f"s_add_u32 s{sT0}, s{sLeft}, 1")
    A(f"s_cmp_eq_u32 s{sT0}, s{sItem}")
    A("s_cbranch_scc1 L_fin")
    for _ in range(7):
        S()
        if slot[0] < 16: A("s_nop 0")
    A("s_waitcnt vmcnt(8)")
    for kk in range(8):
        A(f"ds_read_b128 v[{vK+4*kk}:{vK+4*kk+3}], v{vKA+kk}")
    A(f"s_mov_b32 s{sLam}, s{sLamN}")
    A(f"s_mov_b32 s{sRem}, s{sRemN}")
    A(f"s_sub_u32 s{sLeft}, s{sLeft}, 1")
    A("s_cbranch_scc0 L_loop")
    A("L_fin:")
    if stamps:
        A(f"s_memrealtime s[{sTS+4}:{sTS+5}]")
    A(f"v_mov_b32 v{vt1}, v{vLs}")
    A(f"v_mul_f32 v{vAl}, s{sC}, v{vM}")
    for i in range(1, 8):
        A(f"v_xor_b32 v{vS+i}, {i*16}, v{vWA}")
    A(f"v_permlane32_swap_b32 v{vLs}, v{vt1}")
    A("s_nop 1")
    A(f"v_add_f32 v{vAl2}, v{vLs}, v{vt1}")
    A("s_nop 0")
    A(f"ds_write_b64 v{vMA}, v[{vAl}:{vAl+1}]")
    for jj in range(16):
        a = vWA if (jj & 7) == 0 else vS + (jj & 7)
        A(f"ds_write_b128 v{a}, v[{vO+4*jj}:{vO+4*jj+3}] offset:{(jj>>3)*128}")
    A("s_waitcnt lgkmcnt(0)")
    A("s_barrier")
    for t in range(2):
        A(f"ds_read_b128 v[{vV+8*t}:{vV+8*t+3}], v{vMR} offset:{t*128}")
        A(f"ds_read_b128 v[{vV+8*t+4}:{vV+8*t+7}], v{vMR} offset:{t*128+16}")
    for t in range(2):
        for ww in range(4):
            for hh in range(2):
                r = vO + t*32 + ww*8 + hh*4
                A(f"ds_read_b128 v[{r}:{r+3}], v{vRA+t} offset:{ww*16384+hh*256}")
        if t == 0: A("s_waitcnt lgkmcnt(8)")
    for t in range(2):
        b = vV + 8*t
        A(f"v_max3_f32 v{vt0}, v{b}, v{b+2}, v{b+4}")
        A(f"v_max_f32 v{vt0}, v{vt0}, v{b+6}")
        for ww in range(4):
            A(f"v_sub_f32 v{b+2*ww}, v{b+2*ww}, v{vt0}")
        for ww in range(4):
            A(f"v_exp_f32 v{b+2*ww}, v{b+2*ww}")
        A("s_nop 0")
        A(f"v_mul_f32 v{vt1}, v{b}, v{b+1}")
        for ww in range(1, 4):
            A(f"v_fma_f32 v{vt1}, v{b+2*ww}, v{b+2*ww+1}, v{vt1}")
        A(f"v_rcp_f32 v{vt1}, v{vt1}")
        A("s_nop 0")
        for ww in range(4):
            A(f"v_mul_f32 v{b+2*ww}, v{b+2*ww}, v{vt1}")
    for t in range(2):
        b = vV + 8*t
        A(f"s_waitcnt lgkmcnt({8 if t == 0 else 0})")
        for i in range(8):
            A(f"v_mul_f32 v{vS+i}, v{b}, v{vO+t*32+i}")
        for ww in range(1, 4):
            for i in range(8):
                A(f"v_fma_f32 v{vS+i}, v{b+2*ww}, v{vO+t*32+ww*8+i}, v{vS+i}")
        for i in range(4):
            A(f"v_cvt_pk_bf16_f32 v{vP+4*t+i}, v{vS+2*i}, v{vS+2*i+1}")
        A(f"buffer_store_dwordx4 v[{vP+4*t}:{vP+4*t+3}], v{vSO}, s[{rO}:{rO+3}], s{sOutOff} offen offset:{t*1024} {stpol}")
    A(f"s_cmp_eq_u32 s{sItem}, 1")
    A("s_cbranch_scc1 L_end")
    A("s_barrier")
    A(f"s_mov_b32 s{sItem}, 1")
    A(f"s_mov_b32 s{sLeft}, s{sNB}")
    A(f"s_mov_b32 s{sRemB0}, 0")
    A(f"s_mov_b32 s{sZA}, s{sZB}")
    A(f"s_add_u32 s{sQd}, s{sQd}, 8192")
    A(f"s_lshl_b32 s{sT1}, s{sBB}, 17")
    A(f"s_lshl_b32 s{sT2}, s{sHB}, 13")
    A(f"s_add_u32 s{sOutOff}, s{sT1}, s{sT2}")
    A("s_branch L_item")
    A("L_end:")
    if stamps:
        A("s_waitcnt vmcnt(0)")
        A(f"s_memrealtime s[{sTS+6}:{sTS+7}]")
        A(f"s_mov_b32 s{rWS}, s{sWS}")
        A(f"s_mov_b32 s{rWS+1}, s{sWS+1}")
        A(f"s_mov_b32 s{rWS+2}, 0x100000")
        A(f"s_mov_b32 s{rWS+3}, 0x20000")
        A("s_waitcnt lgkmcnt(0)")
        for k in range(8):
            A(f"v_mov_b32 v{vS+k}, s{sTS+k}")
        A(f"s_getreg_b32 s{sT0}, hwreg(HW_REG_XCC_ID)")
        A(f"v_mov_b32 v{vS+8}, s{sT0}")
        A(f"s_lshl_b32 s{sT0}, s2, 2")
        A(f"s_add_u32 s{sT0}, s{sT0}, s{sW}")
        A(f"s_lshl_b32 s{sT0}, s{sT0}, 6")
        A(f"v_mov_b32 v{vt0}, 0")
        A(f"v_cmp_eq_u32 vcc, 0, v{vL}")
        A(f"s_and_saveexec_b64 s[{sT2+1}:{sT2+2}], vcc")
        A(f"buffer_store_dwordx4 v[{vS}:{vS+3}], v{vt0}, s[{rWS}:{rWS+3}], s{sT0} offen")
        A(f"buffer_store_dwordx4 v[{vS+4}:{vS+7}], v{vt0}, s[{rWS}:{rWS+3}], s{sT0} offen offset:16")
        A(f"buffer_store_dword v{vS+8}, v{vt0}, s[{rWS}:{rWS+3}], s{sT0} offen offset:32")
    A("L_done:")
    A("s_endpgm")
    A('.section .rodata,"a"')
    A(".p2align 6")
    A(f".amdhsa_kernel {name}")
    A(f"  .amdhsa_next_free_vgpr {NV}")
    A("  .amdhsa_next_free_sgpr 96")
    A(f"  .amdhsa_accum_offset {NV}")
    A("  .amdhsa_group_segment_fixed_size 0")
    A("  .amdhsa_kernarg_size 64")
    A("  .amdhsa_user_sgpr_count 2")
    A("  .amdhsa_user_sgpr_kernarg_segment_ptr 1")
    A("  .amdhsa_system_sgpr_workgroup_id_x 1")
    A(".end_amdhsa_kernel")
    out = []
    for l in L:
        if l.startswith((";", ".", "L_", name, "  .")): out.append(l)
        else: out.append("    " + l.rstrip())
    return "\n".join(out) + "\n"

if __name__ == "__main__":
    W = int(sys.argv[1]) if len(sys.argv) > 1 else 6
    sys.stdout.write(gen(W))
```
